```python
import torch

def _softmax(x, axis=-1):
    return torch.softmax(x, dim=axis)
def _gelu(x):
    return torch.nn.functional.gelu(x, approximate="tanh")
def _silu(x):
    return torch.nn.functional.silu(x)
def _sigmoid(x):
    return torch.sigmoid(x)
def _layernorm(x, axis=-1, eps=1e-5):
    m = x.mean(dim=axis, keepdim=True)
    v = x.var(dim=axis, keepdim=True, unbiased=False)
    return (x - m) / torch.sqrt(v + eps)
def _scatter_add(tgt, idx, src, axis=0):
    return tgt.clone().index_add_(axis, idx, src)
def _segment_sum(src, seg, n):
    out = torch.zeros((n,) + src.shape[1:], dtype=src.dtype)
    return out.index_add_(0, seg, src)
def _pad(x, pw):
    flat = tuple(v for pair in reversed(pw) for v in pair)
    return torch.nn.functional.pad(x, flat)

kernel_name = 'parallel_sum__mha_block_cached__dense_activation_silu__decode'

def setup_inputs():

    _w = (lambda a: (lambda t: t.to(torch.bfloat16) if t.is_floating_point() else t)(torch.as_tensor(a)))
    def _A_setup():
        B, Sq, D = 2, 1, 640
        H, Sk, Dh = 32, 4096, 128
        return {
            "x": _w((lambda *s: torch.randn(*s, dtype=torch.bfloat16) * 0.05)(B, Sq, D)),
            "k_cache": _w((lambda *s: torch.randn(*s, dtype=torch.bfloat16) * 3.2)(B, H, Sk, Dh)),
            "v_cache": _w((lambda *s: torch.randn(*s, dtype=torch.bfloat16) * 0.8)(B, H, Sk, Dh)),
            "wq": _w((lambda *s: torch.randn(*s, dtype=torch.bfloat16) * 3.2)(D, H * Dh) * (D ** -0.5)),
            "wo": _w((lambda *s: torch.randn(*s, dtype=torch.bfloat16) * 0.8)(H * Dh, D) * ((H * Dh) ** -0.5)),
        }
    _A_in = _A_setup()

    def _B_setup():
        B, S, D, F = 2, 1, 640, 1728
        return {
            "x": _w((lambda *s: torch.randn(*s, dtype=torch.bfloat16) * 0.05)(B, S, D)),
            "w1": _w((lambda *s: torch.randn(*s, dtype=torch.bfloat16) * 3.2)(D, F) * (D ** -0.5)),
            "w2": _w((lambda *s: torch.randn(*s, dtype=torch.bfloat16) * 0.4)(F, D) * (F ** -0.5)),
        }
    _B_in = _B_setup()

    return {
        "A_x": _A_in["x"],
        "A_k_cache": _A_in["k_cache"],
        "A_v_cache": _A_in["v_cache"],
        "A_wq": _A_in["wq"],
        "A_wo": _A_in["wo"],
        "B_x": _B_in["x"],
        "B_w1": _B_in["w1"],
        "B_w2": _B_in["w2"],
    }

def reference(A_x, A_k_cache, A_v_cache, A_wq, A_wo, B_x, B_w1, B_w2):
    def _A_ref(x, k_cache, v_cache, wq, wo):
        B, Sq, D = x.shape
        H, Dh = 32, 128
        q = (lambda x, *d: x.permute(*d))((x @ wq).reshape(B, Sq, H, Dh), 0, 2, 1, 3)
        scores = torch.einsum("bhqd,bhkd->bhqk", q, k_cache) * (Dh ** -0.5)
        p = _softmax(scores, axis=-1)
        o = torch.einsum("bhqk,bhkd->bhqd", p, v_cache)
        return (lambda x, *d: x.permute(*d))(o, 0, 2, 1, 3).reshape(B, Sq, H * Dh) @ wo

    def _B_ref(x, w1, w2):
        h = torch.einsum("bsd,df->bsf", x, w1)
        h = _silu(h)
        out = torch.einsum("bsf,fd->bsd", h, w2)
        return out

    x = A_x
    xn = _layernorm(x, axis=-1)
    return x + _A_ref(xn, A_k_cache, A_v_cache, A_wq, A_wo) + _B_ref(xn, B_w1, B_w2)
```

```python
import re

TRANS = ("v_exp_f32", "v_log_f32", "v_rcp_f32", "v_rsq_f32", "v_sqrt_f32", "v_sin_f32", "v_cos_f32", "v_rcp_iflag_f32")

def _regs(tok):
    tok = tok.strip()
    neg = tok.lstrip("-").strip()
    if neg.startswith("abs(") or neg.startswith("|"):
        neg = neg.replace("abs(", "").replace(")", "").replace("|", "")
    m = re.fullmatch(r"([vsa])(\d+)", neg)
    if m:
        return {(m.group(1), int(m.group(2)))}
    m = re.fullmatch(r"([vsa])\[(\d+):(\d+)\]", neg)
    if m:
        return {(m.group(1), i) for i in range(int(m.group(2)), int(m.group(3)) + 1)}
    if neg in ("vcc", "vcc_lo", "vcc_hi"):
        return {("s", "vcc")}
    if neg in ("exec", "exec_lo", "exec_hi"):
        return {("s", "exec")}
    if neg == "m0":
        return {("s", "m0")}
    return set()

class Ins:
    def __init__(self, text):
        self.text = text
        body = text.split(";")[0].strip()
        body = body.split("//")[0].strip()
        self.is_label = body.endswith(":")
        self.op = None
        self.dst = set(); self.src = set()
        self.ws = 1
        if self.is_label or not body or body.startswith("."):
            self.ws = 0
            return
        parts = body.split(None, 1)
        self.op = parts[0]
        rest = parts[1] if len(parts) > 1 else ""
        ops = []; cur = ""; depth = 0
        for ch in rest:
            if ch == "[": depth += 1
            if ch == "]": depth -= 1
            if ch == "," and depth == 0:
                ops.append(cur.strip()); cur = ""
            else:
                cur += ch
        if cur.strip(): ops.append(cur.strip())
        mods = ""
        if ops:
            last = ops[-1].split(None, 1)
            ops[-1] = last[0]
            if len(last) > 1: mods = last[1]
        self.ops = ops; self.mods = mods
        op = self.op
        self.valu = op.startswith("v_") and not op.startswith("v_mfma")
        self.mfma = op.startswith("v_mfma")
        self.salu = op.startswith("s_")
        self.vmem = op.startswith(("buffer_", "global_", "flat_"))
        self.ds = op.startswith("ds_")
        self.dpp = ("_dpp" in op) or any(k in mods for k in ("row_", "quad_perm", "wave_"))
        self.trans = any(op.startswith(t) for t in TRANS)
        self.dot = op.startswith("v_dot")
        self.permlane = op.startswith("v_permlane")
        self.readlane = op.startswith(("v_readlane", "v_readfirstlane"))
        self.writelane = op.startswith("v_writelane")
        R = [_regs(o) for o in ops]
        if op == "s_nop":
            self.ws = int(ops[0], 0) + 1
        if self.valu or self.mfma:
            if op.startswith("v_cmp"):
                self.dst = R[0]; self.src = set().union(*R[1:]) if len(R) > 1 else set()
            elif self.permlane:
                self.dst = R[0] | R[1]; self.src = R[0] | R[1]
            elif op.startswith(("v_add_co", "v_sub_co", "v_subrev_co", "v_addc_co", "v_subb_co", "v_div_scale", "v_mad_u64")):
                self.dst = R[0] | R[1]; self.src = set().union(*R[2:])
            else:
                self.dst = R[0]; self.src = set().union(*R[1:]) if len(R) > 1 else set()
                if op.startswith(("v_fmac", "v_dot2c", "v_mac", "v_writelane", "v_pk_fmac")) or self.dpp:
                    self.src |= R[0]
                if op.startswith("v_cndmask") and len(ops) == 3:
                    self.src |= {("s", "vcc")}
        elif self.vmem:
            lds = " lds" in (" " + mods)
            if "load" in op or ("atomic" in op and "sc0" in mods):
                if lds or op.startswith("global_load_lds"):
                    self.src = set().union(*R); self.src |= {("s", "m0")}
                    self.ldsdma = True
                else:
                    self.dst = R[0]; self.src = set().union(*R[1:])
            else:
                self.src = set().union(*R)
                if op.startswith("buffer_store"):
                    self.sdata = R[0]
                else:
                    self.sdata = R[1]
        elif self.ds:
            if op.startswith(("ds_read", "ds_bpermute", "ds_permute", "ds_swizzle")) or "_rtn" in op:
                self.dst = R[0]; self.src = set().union(*R[1:]) if len(R) > 1 else set()
            else:
                self.src = set().union(*R)
        elif self.salu:
            if op.startswith(("s_cmp", "s_cbranch", "s_branch", "s_waitcnt", "s_barrier", "s_endpgm", "s_sleep", "s_setprio", "s_nop", "s_bitcmp")):
                self.src = set().union(*R) if R else set()
            elif op.startswith("s_load") or op.startswith("s_buffer_load"):
                self.dst = R[0]; self.src = set().union(*R[1:])
            else:
                self.dst = R[0] if R else set(); self.src = set().union(*R[1:]) if len(R) > 1 else set()
                if "saveexec" in op:
                    self.dst |= {("s", "exec")}; self.src |= {("s", "exec")}

def vonly(regs): return {r for r in regs if r[0] in ("v", "a")}
def sonly(regs): return {r for r in regs if r[0] == "s"}

def need(prod, cons):
    n = 0
    pv = vonly(prod.dst); ps = sonly(prod.dst)
    if prod.op is None or cons.op is None: return 0
    cv_src = vonly(cons.src); cv_dst = vonly(cons.dst); cs_src = sonly(cons.src)
    if getattr(prod, "valu", False):
        if pv & cv_src:
            if cons.dpp: n = max(n, 2)
            if cons.permlane: n = max(n, 2)
            if cons.readlane: n = max(n, 1)
            if cons.mfma: n = max(n, 2)
            if prod.trans and not cons.trans and (cons.valu or cons.mfma or cons.vmem or cons.ds): n = max(n, 1)
        if prod.dot and (pv & (cv_src | cv_dst)):
            if cons.op != prod.op:
                n = max(n, 3)
            else:
                if cons.op.startswith("v_dot2c"):
                    ab = set().union(*[_regs(o) for o in cons.ops[1:3]])
                else:
                    ab = set().union(*[_regs(o) for o in cons.ops[1:3]])
                if pv & vonly(ab): n = max(n, 3)
        if ps:
            hit = ps & cs_src
            if hit:
                if cons.vmem: n = max(n, 5)
                if cons.valu:
                    n = max(n, 2)
                    if cons.readlane or cons.writelane: n = max(n, 4)
                if cons.salu: n = max(n, 1)
            if ("s", "exec") in ps and (cons.dpp): n = max(n, 5)
    if getattr(prod, "mfma", False):
        if pv & (cv_src | cv_dst):
            if cons.mfma:
                c = _regs(cons.ops[3]); ab = _regs(cons.ops[1]) | _regs(cons.ops[2])
                if pv & ab: n = max(n, 8)
                if pv & c and c != pv: n = max(n, 6)
            else:
                n = max(n, 8)
        pc = vonly(_regs(prod.ops[3]))
        if cons.valu and (pc & cv_dst): n = max(n, 3)
    if getattr(prod, "vmem", False) and hasattr(prod, "sdata"):
        wide = ("x4" in prod.op) or ("x3" in prod.op)
        if wide and (vonly(prod.sdata) & cv_dst):
            n = max(n, 2 if cons.valu else 1)
    if getattr(prod, "salu", False) and ("s", "m0") in ps:
        if getattr(cons, "ldsdma", False): n = max(n, 1)
    return n

class Asm:
    def __init__(self):
        self.lines = []
    def __call__(self, s):
        for l in s.split("\n"):
            l = l.strip()
            if l: self.lines.append(l)
    def raw(self, s):
        self.lines.append(s)
    def finish(self, verbose=False):
        out = []; hist = []
        npad = 0
        for l in self.lines:
            ins = Ins(l)
            if ins.is_label:
                out.append(l); hist = [];
                out.append("s_nop 4"); continue
            if ins.op is None:
                out.append(l); continue
            req = 0; dist = 0
            for p in reversed(hist):
                if dist >= 12: break
                r = need(p, ins) - dist
                req = max(req, r)
                dist += p.ws
            if req > 0:
                nop = Ins(f"s_nop {req-1}")
                out.append(nop.text); hist.append(nop); npad += 1
                if verbose: print("pad", req, "before", l)
            out.append(l); hist.append(ins)
            if ins.op.startswith(("s_cbranch", "s_branch")):
                pass
            if len(hist) > 24: hist = hist[-24:]
        self.npad = npad
        res = []
        for l in out:
            if l.endswith(":") or l.startswith("."): res.append(l)
            else: res.append("  " + l)
        return "\n".join(res) + "\n"
```

```python
import sys, struct
from asmlib import Asm
KN = "parallel_sum__mha_block_cached__dense_activation_silu__decode"
HDR = open("cdna_kernels/%s.s.ref" % KN).read().split("; Override")[0]

def f32(x): return "0x%08x" % struct.unpack("<I", struct.pack("<f", x))[0]

WO_LDS = 0
W2_LDS = 20480
Q_LDS = 30720
QFLAG = 30976
H_LDS = 31232
MAX_LDS = 31488
L_LDS = 31552
OF_LDS = 31744
O_LDS = 32768
LDS_SIZE = 40960
G0 = 0x1000
G1O = 0xC8000
G1ML = 0x108000
G2A = 0x110000
G2B = 0x160000
STAMPS = 0x200000
WS_REC = 0x400000
SPIN_MAX = 1 << 20

def gen(name, nt="nt", diag=False, wnt="nt", sleep_q=1):
    a = Asm()
    NST = 8
    def stamp(i):
        if diag:
            a(f"s_memrealtime s[{80+2*i}:{81+2*i}]")
    a(f"{KN}_kernel:")
    a.lines.pop()
    a("s_cmp_ge_u32 s2, 256")
    a("s_cbranch_scc1 L_end")
    a("s_load_dwordx16 s[4:19], s[0:1], 0")
    a("s_load_dwordx4 s[20:23], s[0:1], 64")
    a("s_load_dwordx2 s[24:25], s[0:1], 80")
    if diag:
        for i in range(NST):
            a(f"s_mov_b32 s{80+2*i}, 0"); a(f"s_mov_b32 s{81+2*i}, 0")
    stamp(0)
    a("v_lshrrev_b32 v2, 6, v0")
    a("v_and_b32 v0, 63, v0")
    a("v_readfirstlane_b32 s26, v2")
    a("s_and_b32 s56, s2, 7")
    a("s_lshr_b32 s57, s2, 3")
    a("s_lshr_b32 s58, s56, 1")
    a("s_lshl_b32 s52, s58, 3")
    a("s_lshr_b32 s59, s57, 2")
    a("s_add_u32 s52, s52, s59")
    a("s_bfe_u32 s53, s57, 0x10001")
    a("s_and_b32 s54, s57, 1")
    a("s_lshl_b32 s54, s54, 1")
    a("s_and_b32 s59, s56, 1")
    a("s_or_b32 s54, s54, s59")
    a("s_lshl_b32 s55, s53, 2")
    a("s_or_b32 s55, s55, s54")
    a("s_mov_b32 s60, 0x05040100")
    a("s_mov_b32 s61, 0x07060302")
    a(f"s_mov_b32 s62, {f32(128 ** -0.5)}")
    a(f"s_mov_b32 s63, {f32(1.4426950408889634)}")
    a("s_mov_b32 s74, 0xffff0000")
    a("s_movk_i32 s76, 0x1000")
    a("s_movk_i32 s77, 0x2000")
    a("s_movk_i32 s78, 0x3000")
    a("s_lshl_b32 s56, s53, 5")
    a("s_add_u32 s56, s56, s52")
    a("s_lshl_b32 s56, s56, 20")
    a("s_lshl_b32 s57, s54, 18")
    a("s_add_u32 s56, s56, s57")
    a("v_lshlrev_b32 v1, 4, v0")
    a("s_lshl_b32 s57, s26, 14")
    a("v_add_u32 v1, s57, v1")
    a(f"v_mov_b32 v2, {QFLAG}")
    a("v_mov_b32 v3, 0")
    a("ds_write_b32 v2, v3")
    a("s_waitcnt lgkmcnt(0)")
    a("s_barrier")
    a("s_load_dword s27, s[24:25], 0")
    a("s_add_u32 s28, s6, s56"); a("s_addc_u32 s29, s7, 0"); a("s_mov_b32 s30, 0x40000"); a("s_mov_b32 s31, 0x20000")
    a("s_add_u32 s32, s8, s56"); a("s_addc_u32 s33, s9, 0"); a("s_mov_b32 s34, 0x40000"); a("s_mov_b32 s35, 0x20000")
    a("s_mov_b32 s36, s24"); a("s_mov_b32 s37, s25"); a(f"s_mov_b32 s38, {WS_REC}"); a("s_mov_b32 s39, 0x20000")
    a("s_mov_b32 s44, s4"); a("s_mov_b32 s45, s5"); a("s_movk_i32 s46, 2560"); a("s_mov_b32 s47, 0x20000")
    a("s_mov_b32 s48, s20"); a("s_mov_b32 s49, s21"); a("s_movk_i32 s50, 2560"); a("s_mov_b32 s51, 0x20000")

    def kloads():
        so = ["0", "s76", "s77", "s78"]
        for j in range(16):
            a(f"buffer_load_dwordx4 v[{16+4*j}:{19+4*j}], v1, s[28:31], {so[j//4]} offen offset:{(j%4)*1024} {nt}")
    VORD = [0,4,2,6,1,5,3,7,8,12,10,14,9,13,11,15]
    def vreg(n): return 80 + 4*n if n < 10 else 16 + 4*(n-10)
    def vload(n):
        so = ["0", "s76", "s77", "s78"]
        j = VORD[n]; r = vreg(n)
        a(f"buffer_load_dwordx4 v[{r}:{r+3}], v1, s[32:35], {so[j//4]} offen offset:{(j%4)*1024} {nt}")
    def tag_ready():
        a("s_waitcnt lgkmcnt(0)")
        a("s_add_u32 s27, s27, 1")
    def tagcheck(regs, label, cnt="s64"):
        regs = list(regs)
        def tree(op, dst):
            rs = regs[:]
            x = rs[:3]; rs = rs[3:]
            a(f"{op} {dst}, {x[0]}, {x[1]}, {x[2]}")
            while rs:
                x = rs[:2]; rs = rs[2:]
                a(f"{op} {dst}, {dst}, {x[0]}, {x[-1]}")
        tree("v_min3_u32", "v126"); tree("v_max3_u32", "v127")
        a("v_cmp_ne_u32 vcc, s27, v126")
        a("v_cmp_ne_u32 s[58:59], s27, v127")
        a("s_or_b64 s[58:59], vcc, s[58:59]")
        a(f"s_cbranch_scc0 {label}_ok")
        a(f"s_add_u32 {cnt}, {cnt}, 1")
        a(f"s_cmp_lt_u32 {cnt}, {SPIN_MAX}")
        a(f"s_cbranch_scc1 {label}")
        a(f"{label}_ok:")

    a("s_cmp_lt_u32 s26, 2")
    a("s_cbranch_scc1 L_p1")
    a("s_cmp_eq_u32 s26, 2")
    a("s_cbranch_scc0 L_notw2")
    a("s_cmp_lt_u32 s52, 27")
    a("s_cbranch_scc1 L_p1")
    a("s_branch L_plain")
    a("L_notw2:")
    a("s_cmp_eq_u32 s26, 3")
    a("s_cbranch_scc1 L_qgather")
    a("s_cmp_lt_u32 s26, 8")
    a("s_cbranch_scc0 L_plain")
    a("s_mul_i32 s56, s52, 163840")
    a("s_mul_i32 s57, s55, 160")
    a("s_add_u32 s56, s56, s57")
    a("s_add_u32 s40, s12, s56"); a("s_addc_u32 s41, s13, 0"); a(f"s_mov_b32 s42, {127*1280+160}"); a("s_mov_b32 s43, 0x20000")
    a("s_sub_u32 s56, s26, 4")
    a("s_mul_i32 s56, s56, 5")
    a("s_lshl_b32 s57, s56, 6")
    a("v_add_u32 v2, s57, v0")
    a("s_lshl_b32 s57, s56, 10")
    a("s_movk_i32 s59, 6554")
    for n in range(5):
        a("v_mul_u32_u24 v3, s59, v2")
        a("v_lshrrev_b32 v3, 16, v3")
        a("v_mul_u32_u24 v4, 10, v3")
        a("v_sub_u32 v4, v2, v4")
        a("v_lshlrev_b32 v4, 4, v4")
        a("s_movk_i32 s58, 1280")
        a("v_mad_u32_u24 v4, v3, s58, v4")
        a(f"s_add_u32 m0, s57, {WO_LDS + n*1024}")
        a(f"buffer_load_dwordx4 v4, s[40:43], 0 offen {wnt} lds")
        if n < 4: a("v_add_u32 v2, 64, v2")
    a("s_branch L_plain")

    a("L_p1:")
    a("s_setprio 3")
    a("v_lshrrev_b32 v2, 5, v0")
    a("v_mul_u32_u24 v2, 1280, v2")
    a("v_and_b32 v3, 31, v0")
    a("v_mul_u32_u24 v3, 40, v3")
    a("v_add_u32 v2, v2, v3")
    a("buffer_load_dwordx4 v[16:19], v2, s[44:47], 0 offen")
    a("buffer_load_dwordx4 v[20:23], v2, s[44:47], 0 offen offset:16")
    a("buffer_load_dwordx2 v[24:25], v2, s[44:47], 0 offen offset:32")
    a("v_lshrrev_b32 v3, 3, v0")
    a("v_mul_u32_u24 v4, 20, v3")
    a("s_mul_i32 s56, s55, 160")
    a("buffer_load_dwordx4 v[26:29], v4, s[44:47], s56 offen")
    a("buffer_load_dword v30, v4, s[44:47], s56 offen offset:16")
    a("buffer_load_dwordx4 v[32:35], v4, s[44:47], s56 offen offset:1280")
    a("buffer_load_dword v36, v4, s[44:47], s56 offen offset:1296")
    a("s_cmp_eq_u32 s26, 2")
    a("s_cbranch_scc1 L_p1_w1")
    a("s_movk_i32 s57, 0x2000")
    a("s_mul_i32 s56, s55, 655360")
    a("s_lshl_b32 s58, s52, 8")
    a("s_add_u32 s56, s56, s58")
    a("s_lshl_b32 s58, s26, 7")
    a("s_add_u32 s56, s56, s58")
    a("s_add_u32 s40, s10, s56"); a("s_addc_u32 s41, s11, 0")
    a(f"s_mov_b32 s42, {79*8192+128}")
    a("s_branch L_p1_go")
    a("L_p1_w1:")
    a("s_movk_i32 s57, 3456")
    a("s_mul_i32 s56, s55, 276480")
    a("s_lshl_b32 s58, s52, 7")
    a("s_add_u32 s56, s56, s58")
    a("s_add_u32 s40, s16, s56"); a("s_addc_u32 s41, s17, 0")
    a(f"s_mov_b32 s42, {79*3456+128}")
    a("L_p1_go:")
    a("s_mov_b32 s43, 0x20000")
    a("s_mul_i32 s58, s57, 10")
    a("v_mul_lo_u32 v4, v3, s58")
    a("v_and_b32 v5, 7, v0")
    a("v_lshlrev_b32 v5, 4, v5")
    a("v_add_u32 v4, v4, v5")
    a("s_mov_b32 s56, 0")
    for i in range(10):
        a(f"buffer_load_dwordx4 v[{80+4*i}:{83+4*i}], v4, s[40:43], s56 offen {wnt}")
        if i < 9: a("s_add_u32 s56, s56, s57")
    a("s_cmp_eq_u32 s26, 2")
    a("s_cbranch_scc0 L_p1_nodma")
    a("s_mul_i32 s56, s52, 81920")
    a("s_mul_i32 s57, s55, 160")
    a("s_add_u32 s56, s56, s57")
    a("s_add_u32 s64, s18, s56"); a("s_addc_u32 s65, s19, 0"); a(f"s_mov_b32 s66, {63*1280+160}"); a("s_mov_b32 s67, 0x20000")
    a("v_mov_b32 v2, v0")
    a("s_movk_i32 s59, 6554")
    a("s_movk_i32 s58, 1280")
    for n in range(10):
        a("v_mul_u32_u24 v3, s59, v2")
        a("v_lshrrev_b32 v3, 16, v3")
        a("v_mul_u32_u24 v5, 10, v3")
        a("v_sub_u32 v5, v2, v5")
        a("v_lshlrev_b32 v5, 4, v5")
        a("v_mad_u32_u24 v5, v3, s58, v5")
        a(f"s_movk_i32 m0, {W2_LDS + n*1024}")
        a(f"buffer_load_dwordx4 v5, s[64:67], 0 offen {wnt} lds")
        if n < 9: a("v_add_u32 v2, 64, v2")
    a("s_waitcnt vmcnt(24)")
    a("s_branch L_p1_ln")
    a("L_p1_nodma:")
    a("s_waitcnt vmcnt(14)")
    a("L_p1_ln:")
    stamp(1)
    a("s_mov_b32 s56, 0x3f803f80")
    a("v_dot2_f32_bf16 v40, v16, s56, 0")
    a("v_dot2_f32_bf16 v41, v17, s56, 0")
    for k in range(2, 10, 2):
        a(f"v_dot2_f32_bf16 v40, v{16+k}, s56, v40")
        a(f"v_dot2_f32_bf16 v41, v{17+k}, s56, v41")
    a("v_add_f32 v40, v40, v41")
    def half_reduce(r, t, op="v_add_f32"):
        for ror in (8, 4, 2, 1):
            a(f"{op}_dpp {r}, {r}, {r} row_ror:{ror} row_mask:0xf bank_mask:0xf")
        a(f"v_mov_b32 {t}, {r}")
        a(f"v_permlane16_swap_b32 {r}, {t}")
        a(f"{op} {r}, {r}, {t}")
    half_reduce("v40", "v41")
    a(f"v_mul_f32 v40, {f32(1.0/640)}, v40")
    a("v_mov_b32 v42, 0"); a("v_mov_b32 v43, 0")
    for k in range(10):
        a(f"v_lshlrev_b32 v44, 16, v{16+k}")
        a(f"v_and_b32 v45, s74, v{16+k}")
        a("v_sub_f32 v44, v44, v40")
        a("v_sub_f32 v45, v45, v40")
        a("v_fmac_f32 v42, v44, v44")
        a("v_fmac_f32 v43, v45, v45")
    a("v_add_f32 v42, v42, v43")
    half_reduce("v42", "v41")
    a(f"v_mul_f32 v42, {f32(1.0/640)}, v42")
    a("v_cvt_pk_bf16_f32 v44, v40, v42")
    a("v_lshlrev_b32 v40, 16, v44")
    a("v_and_b32 v42, s74, v44")
    a(f"v_add_f32 v42, {f32(1e-5)}, v42")
    a("v_cvt_pk_bf16_f32 v42, v42, v42")
    a("v_and_b32 v42, s74, v42")
    a("v_sqrt_f32 v42, v42")
    a("v_cvt_pk_bf16_f32 v42, v42, v42")
    a("v_and_b32 v42, s74, v42")
    a("v_rcp_f32 v43, v42")
    a("v_readlane_b32 s68, v40, 0"); a("v_readlane_b32 s69, v40, 32")
    a("v_readlane_b32 s70, v42, 0"); a("v_readlane_b32 s71, v42, 32")
    a("v_readlane_b32 s72, v43, 0"); a("v_readlane_b32 s73, v43, 32")
    a("s_cmp_eq_u32 s26, 2")
    a("s_cbranch_scc1 L_p1_wx2")
    a("s_waitcnt vmcnt(10)")
    a("s_branch L_p1_wx")
    a("L_p1_wx2:")
    a("s_waitcnt vmcnt(20)")
    a("L_p1_wx:")
    for b in range(2):
        mb, den, rd = f"s{68+b}", f"s{70+b}", f"s{72+b}"
        for k in range(5):
            x = f"v{(26 if b == 0 else 32)+k}"
            a(f"v_lshlrev_b32 v44, 16, {x}")
            a(f"v_and_b32 v45, s74, {x}")
            a(f"v_subrev_f32 v44, {mb}, v44")
            a(f"v_subrev_f32 v45, {mb}, v45")
            a(f"v_cvt_pk_bf16_f32 v46, v44, v45")
            a(f"v_lshlrev_b32 v44, 16, v46")
            a(f"v_and_b32 v45, s74, v46")
            a(f"v_mul_f32 v46, {rd}, v44")
            a(f"v_mul_f32 v47, {rd}, v45")
            a(f"v_fma_f32 v44, -v46, {den}, v44")
            a(f"v_fma_f32 v45, -v47, {den}, v45")
            a(f"v_fma_f32 v46, v44, {rd}, v46")
            a(f"v_fma_f32 v47, v45, {rd}, v47")
            a(f"v_cvt_pk_bf16_f32 {x}, v46, v47")
    a("s_cmp_eq_u32 s26, 2")
    a("s_cbranch_scc1 L_p1_gw2")
    a("s_waitcnt vmcnt(0)")
    a("s_branch L_p1_gw")
    a("L_p1_gw2:")
    a("s_waitcnt vmcnt(10)")
    a("L_p1_gw:")
    for k in range(5):
        A_, B_ = 80+8*k, 84+8*k
        for t in range(4):
            a(f"v_perm_b32 v{64+2*t}, v{B_+t}, v{A_+t}, s60")
            a(f"v_perm_b32 v{65+2*t}, v{B_+t}, v{A_+t}, s61")
        for b in range(2):
            X = f"v{(26 if b == 0 else 32)+k}"
            for t in range(8):
                acc = f"v{48+8*b+t}"
                a(f"v_dot2_f32_bf16 {acc}, {X}, v{64+t}, {'0' if k == 0 else acc}")
    for t in range(8):
        a(f"v_permlane32_swap_b32 v{48+t}, v{56+t}")
    for t in range(8):
        a(f"v_add_f32 v{48+t}, v{48+t}, v{56+t}")
    for t in range(4):
        a(f"v_permlane16_swap_b32 v{48+t}, v{52+t}")
    for t in range(4):
        a(f"v_add_f32 v{48+t}, v{48+t}, v{52+t}")
    a("v_add_f32_dpp v60, v48, v48 row_ror:8 row_mask:0xf bank_mask:0x3")
    a("v_add_f32_dpp v62, v49, v49 row_ror:8 row_mask:0xf bank_mask:0x3")
    a("v_add_f32_dpp v60, v50, v50 row_ror:8 row_mask:0xf bank_mask:0xc")
    a("v_add_f32_dpp v62, v51, v51 row_ror:8 row_mask:0xf bank_mask:0xc")
    tag_ready()
    a("v_mov_b32 v61, s27"); a("v_mov_b32 v63, s27")
    a("v_lshrrev_b32 v2, 5, v0"); a("v_lshlrev_b32 v2, 9, v2")
    a("v_and_b32 v3, 7, v0"); a("v_lshl_add_u32 v2, v3, 6, v2")
    a("v_bfe_u32 v3, v0, 4, 1"); a("v_lshl_add_u32 v2, v3, 5, v2")
    a("v_bfe_u32 v3, v0, 3, 1"); a("v_lshl_add_u32 v2, v3, 4, v2")
    a("s_lshl_b32 s56, s52, 3"); a("s_add_u32 s56, s56, s55"); a("s_mul_i32 s56, s56, 3072")
    a("s_lshl_b32 s57, s26, 10"); a("s_add_u32 s56, s56, s57"); a(f"s_add_u32 s56, s56, {G0}")
    a("buffer_store_dwordx4 v[60:63], v2, s[36:39], s56 offen sc1")
    stamp(2)
    a("s_setprio 0")
    kloads()
    a("s_cmp_eq_u32 s26, 2")
    a("s_cbranch_scc0 L_vpre")
    a("v_lshlrev_b32 v2, 4, v0")
    a("s_mul_i32 s56, s52, 24576")
    a(f"s_add_u32 s56, s56, {G0+2048}")
    a("s_mov_b32 s64, 0")
    a("L_hpoll:")
    a("s_mov_b32 s57, s56")
    for p in range(8):
        a(f"buffer_load_dwordx4 v[{80+4*p}:{83+4*p}], v2, s[36:39], s57 offen sc1")
        if p < 7: a("s_add_u32 s57, s57, 3072")
    a("s_waitcnt vmcnt(0)")
    tagcheck([f"v{81+2*i}" for i in range(16)], "L_hpoll")
    for p in range(1, 8):
        a(f"v_add_f32 v80, v80, v{80+4*p}")
        a(f"v_add_f32 v82, v82, v{82+4*p}")
    a("v_cvt_pk_bf16_f32 v80, v80, v82")
    a("v_lshlrev_b32 v81, 16, v80")
    a("v_and_b32 v82, s74, v80")
    a("v_mul_f32 v83, s63, v81"); a("v_mul_f32 v84, s63, v82")
    a("v_exp_f32 v83, -v83"); a("v_exp_f32 v84, -v84")
    a("v_add_f32 v83, 1.0, v83"); a("v_add_f32 v84, 1.0, v84")
    a("v_rcp_f32 v85, v83"); a("v_rcp_f32 v86, v84")
    a("v_mul_f32 v87, v81, v85"); a("v_mul_f32 v88, v82, v86")
    a("v_fma_f32 v81, -v87, v83, v81"); a("v_fma_f32 v82, -v88, v84, v82")
    a("v_fma_f32 v87, v81, v85, v87"); a("v_fma_f32 v88, v82, v86, v88")
    a("v_cvt_pk_bf16_f32 v80, v87, v88")
    a("v_lshlrev_b32 v2, 2, v0")
    a(f"ds_write_b32 v2, v80 offset:{H_LDS}")
    a("v_bfe_u32 v2, v0, 2, 1"); a("v_lshlrev_b32 v2, 7, v2")
    a("v_lshrrev_b32 v3, 4, v0"); a("v_lshl_add_u32 v2, v3, 4, v2")
    a("v_lshlrev_b32 v3, 3, v3")
    a("v_bfe_u32 v4, v0, 2, 2"); a("v_add_u32 v3, v3, v4"); a("v_mul_u32_u24 v3, 160, v3")
    a("v_and_b32 v4, 3, v0"); a("v_lshl_add_u32 v3, v4, 3, v3")
    a("s_waitcnt lgkmcnt(0)")
    a(f"ds_read_b128 v[80:83], v2 offset:{H_LDS}")
    a(f"ds_read_b128 v[84:87], v2 offset:{H_LDS+64}")
    for ct in range(5):
        for ks in range(2):
            r = 88 + ks*4
            base = W2_LDS + ks*32*160 + 32*ct
            a(f"ds_read_b64_tr_b16 v[{r}:{r+1}], v3 offset:{base}")
            a(f"ds_read_b64_tr_b16 v[{r+2}:{r+3}], v3 offset:{base+640}")
        a("s_waitcnt lgkmcnt(0)")
        d = 96 + 4*ct
        a(f"v_mfma_f32_16x16x32_bf16 v[{d}:{d+3}], v[80:83], v[88:91], 0")
        a(f"v_mfma_f32_16x16x32_bf16 v[{d}:{d+3}], v[84:87], v[92:95], v[{d}:{d+3}]")
        a("s_nop 7")
    a("v_lshrrev_b32 v2, 4, v0"); a("v_mul_u32_u24 v2, 640, v2")
    a("v_and_b32 v3, 15, v0"); a("v_lshl_add_u32 v2, v3, 3, v2")
    a("s_lshl_b32 s56, s55, 5"); a("s_add_u32 s56, s56, s52"); a("s_mul_i32 s56, s56, 1280"); a(f"s_add_u32 s56, s56, {G2B}")
    a("s_mov_b32 exec_hi, 0")
    for ct in range(5):
        d = 96 + 4*ct
        a(f"v_mov_b32 v{d+1}, s27")
        a(f"buffer_store_dwordx2 v[{d}:{d+1}], v2, s[36:39], s56 offen offset:{128*ct} sc1")
    a("s_mov_b64 exec, -1")
    stamp(3)
    a("s_branch L_vpre")

    a("L_qgather:")
    kloads()
    tag_ready()
    a("v_lshrrev_b32 v2, 5, v0"); a("v_lshlrev_b32 v2, 10, v2")
    a("v_and_b32 v3, 31, v0"); a("v_lshl_add_u32 v2, v3, 4, v2")
    a("s_mul_i32 s56, s52, 24576"); a("s_lshl_b32 s57, s53, 9"); a("s_add_u32 s56, s56, s57"); a(f"s_add_u32 s56, s56, {G0}")
    a("s_mov_b32 s64, 0")
    a("L_qpoll:")
    a("s_mov_b32 s57, s56")
    for p in range(8):
        a(f"buffer_load_dwordx4 v[{80+4*p}:{83+4*p}], v2, s[36:39], s57 offen sc1")
        if p < 7: a("s_add_u32 s57, s57, 3072")
    a("s_waitcnt vmcnt(0)")
    tagcheck([f"v{81+2*i}" for i in range(16)], "L_qpoll")
    for p in range(1, 8):
        a(f"v_add_f32 v80, v80, v{80+4*p}")
        a(f"v_add_f32 v82, v82, v{82+4*p}")
    a("v_cvt_pk_bf16_f32 v80, v80, v82")
    a("v_lshlrev_b32 v2, 2, v0")
    a(f"ds_write_b32 v2, v80 offset:{Q_LDS}")
    a("v_mov_b32 v3, 1")
    a(f"v_mov_b32 v2, {QFLAG}")
    a("s_waitcnt lgkmcnt(0)")
    a("ds_write_b32 v2, v3")
    stamp(3)
    a("s_branch L_vpre")

    a("L_plain:")
    kloads()
    tag_ready()
    a("L_vpre:")
    for n in range(10): vload(n)
    a(f"v_mov_b32 v2, {QFLAG}")
    a("s_mov_b32 s64, 0")
    a("L_qwait:")
    a("ds_read_b32 v3, v2")
    a("s_waitcnt lgkmcnt(0)")
    a("v_readfirstlane_b32 s56, v3")
    a("s_cmp_eq_u32 s56, 1")
    a("s_cbranch_scc1 L_qok")
    a(f"s_sleep {sleep_q}")
    a("s_add_u32 s64, s64, 1")
    a(f"s_cmp_lt_u32 s64, {SPIN_MAX}")
    a("s_cbranch_scc1 L_qwait")
    a("L_qok:")
    stamp(4)
    a("v_and_b32 v2, 15, v0")
    a("v_lshlrev_b32 v2, 4, v2")
    a(f"ds_read_b128 v[4:7], v2 offset:{Q_LDS}")
    a("s_waitcnt lgkmcnt(0)")
    def level1(i):
        da, db = 120 + (i & 1)*2, 121 + (i & 1)*2
        a(f"v_add_f32_dpp v{8+i}, v{da}, v{da} row_mirror row_mask:0xf bank_mask:0x3")
        a(f"v_add_f32_dpp v{8+i}, v{db}, v{db} row_mirror row_mask:0xf bank_mask:0xc")
    for i in range(8):
        late = 2*min(i, 3)
        a(f"s_waitcnt vmcnt({(16-2*i-2) + 10 + late})")
        da, db = 120 + (i & 1)*2, 121 + (i & 1)*2
        ka, kb = 16 + 8*i, 20 + 8*i
        for t in range(4):
            a(f"v_dot2_f32_bf16 v{da}, v{ka+t}, v{4+t}, {'0' if t == 0 else f'v{da}'}")
            a(f"v_dot2_f32_bf16 v{db}, v{kb+t}, v{4+t}, {'0' if t == 0 else f'v{db}'}")
        if i < 3:
            vload(10+2*i); vload(11+2*i)
        if i > 0: level1(i-1)
    level1(7)
    for k in range(4):
        a(f"v_add_f32_dpp v{124+k}, v{8+2*k}, v{8+2*k} row_half_mirror row_mask:0xf bank_mask:0x5")
    for k in range(4):
        a(f"v_add_f32_dpp v{124+k}, v{9+2*k}, v{9+2*k} row_half_mirror row_mask:0xf bank_mask:0xa")
    for k in range(4):
        a(f"v_add_f32_dpp v{124+k}, v{124+k}, v{124+k} quad_perm:[1,0,3,2] row_mask:0xf bank_mask:0xf")
    for k in range(4):
        a(f"v_add_f32_dpp v{124+k}, v{124+k}, v{124+k} quad_perm:[2,3,0,1] row_mask:0xf bank_mask:0xf")
    def round_pairs():
        a("v_cvt_pk_bf16_f32 v120, v124, v125")
        a("v_cvt_pk_bf16_f32 v121, v126, v127")
        a("v_lshlrev_b32 v124, 16, v120"); a("v_and_b32 v125, s74, v120")
        a("v_lshlrev_b32 v126, 16, v121"); a("v_and_b32 v127, s74, v121")
    round_pairs()
    for k in range(4): a(f"v_mul_f32 v{124+k}, s62, v{124+k}")
    round_pairs()
    a("v_max3_f32 v122, v124, v125, v126")
    a("v_max_f32 v122, v122, v127")
    a("v_max_f32_dpp v122, v122, v122 row_ror:4 row_mask:0xf bank_mask:0xf")
    a("v_max_f32_dpp v122, v122, v122 row_ror:8 row_mask:0xf bank_mask:0xf")
    a("v_mov_b32 v123, v122"); a("v_permlane32_swap_b32 v122, v123"); a("v_max_f32 v122, v122, v123")
    a("v_mov_b32 v123, v122"); a("v_permlane16_swap_b32 v122, v123"); a("v_max_f32 v122, v122, v123")
    a("s_lshl_b32 s56, s26, 2")
    a("v_mov_b32 v2, s56")
    a("s_mov_b64 exec, 1")
    a(f"ds_write_b32 v2, v122 offset:{MAX_LDS}")
    a("s_mov_b64 exec, -1")
    a("s_waitcnt lgkmcnt(0)")
    stamp(5)
    a("s_barrier")
    a("v_and_b32 v3, 15, v0"); a("v_lshlrev_b32 v3, 2, v3")
    a(f"ds_read_b32 v122, v3 offset:{MAX_LDS}")
    a("s_waitcnt lgkmcnt(0)")
    for ror in (8, 4, 2, 1):
        a(f"v_max_f32_dpp v122, v122, v122 row_ror:{ror} row_mask:0xf bank_mask:0xf")
    a("v_mov_b32 v4, v122")
    for k in range(4): a(f"v_sub_f32 v{124+k}, v{124+k}, v122")
    for k in range(4): a(f"v_mul_f32 v{124+k}, s63, v{124+k}")
    for k in range(4): a(f"v_exp_f32 v{124+k}, v{124+k}")
    a("v_add_f32 v120, v124, v125"); a("v_add_f32 v121, v126, v127")
    a("v_cvt_pk_bf16_f32 v2, v124, v125"); a("v_cvt_pk_bf16_f32 v3, v126, v127")
    a("v_add_f32 v120, v120, v121")
    a("v_add_f32_dpp v120, v120, v120 row_ror:4 row_mask:0xf bank_mask:0xf")
    a("v_add_f32_dpp v120, v120, v120 row_ror:8 row_mask:0xf bank_mask:0xf")
    a("v_mov_b32 v121, v120"); a("v_permlane32_swap_b32 v120, v121"); a("v_add_f32 v120, v120, v121")
    a("v_mov_b32 v121, v120"); a("v_permlane16_swap_b32 v120, v121"); a("v_add_f32 v120, v120, v121")
    a("v_mov_b32 v5, s56")
    a("s_mov_b64 exec, 1")
    a(f"ds_write_b32 v5, v120 offset:{L_LDS}")
    a("s_mov_b64 exec, -1")
    for t in range(8): a(f"v_mov_b32 v{8+t}, 0")
    for t in range(8):
        a(f"s_waitcnt vmcnt({14-2*t})")
        A_, B_ = vreg(2*t), vreg(2*t+1)
        pp = "v2" if t < 4 else "v3"
        beta = t & 3
        for u in range(4):
            a(f"v_perm_b32 v{120+2*u}, v{B_+u}, v{A_+u}, s60")
            a(f"v_perm_b32 v{121+2*u}, v{B_+u}, v{A_+u}, s61")
        for u in range(8):
            a(f"v_dot2c_f32_bf16_dpp v{8+u}, {pp}, v{120+u} row_newbcast:{4*beta} row_mask:0xf bank_mask:0xf")
    for u in range(4): a(f"v_permlane32_swap_b32 v{8+2*u}, v{9+2*u}")
    for u in range(4): a(f"v_add_f32 v{8+2*u}, v{8+2*u}, v{9+2*u}")
    a("v_permlane16_swap_b32 v8, v10"); a("v_permlane16_swap_b32 v12, v14")
    a("v_add_f32 v8, v8, v10"); a("v_add_f32 v12, v12, v14")
    a("v_and_b32 v2, 15, v0"); a("v_lshlrev_b32 v2, 5, v2")
    a("v_bfe_u32 v3, v0, 4, 1"); a("v_lshl_add_u32 v2, v3, 3, v2")
    a("v_lshrrev_b32 v3, 5, v0"); a("v_lshl_add_u32 v2, v3, 2, v2")
    a("s_lshl_b32 s56, s26, 9")
    a("v_add_u32 v2, s56, v2")
    a(f"v_add_u32 v2, {O_LDS}, v2")
    a("ds_write2_b32 v2, v8, v12 offset0:0 offset1:4")
    a("s_cmp_lt_u32 s26, 5")
    a("s_cbranch_scc0 L_nobf")
    a("v_lshrrev_b32 v3, 4, v0"); a("v_lshlrev_b32 v3, 3, v3")
    a("v_bfe_u32 v5, v0, 2, 2"); a("v_add_u32 v3, v3, v5"); a("v_mul_u32_u24 v3, 160, v3")
    a("v_and_b32 v5, 3, v0"); a("v_lshl_add_u32 v3, v5, 3, v3")
    a("s_lshl_b32 s56, s26, 5")
    a("v_add_u32 v3, s56, v3")
    for ks in range(4):
        a(f"ds_read_b64_tr_b16 v[{16+4*ks}:{17+4*ks}], v3 offset:{WO_LDS + ks*5120}")
        a(f"ds_read_b64_tr_b16 v[{18+4*ks}:{19+4*ks}], v3 offset:{WO_LDS + ks*5120 + 640}")
    a("L_nobf:")
    a("s_waitcnt lgkmcnt(0)")
    stamp(6)
    a("s_barrier")
    a("s_cmp_lt_u32 s26, 4")
    a("s_cbranch_scc0 L_barE")
    a("s_lshl_b32 s56, s52, 1"); a("s_add_u32 s56, s56, s53"); a("s_lshl_b32 s56, s56, 2"); a("s_add_u32 s56, s56, s54")
    a("s_cmp_lt_u32 s26, 2")
    a("s_cbranch_scc0 L_notsum")
    a("s_lshl_b32 s57, s26, 8")
    a("v_lshlrev_b32 v2, 2, v0"); a("v_add_u32 v2, s57, v2")
    a(f"v_add_u32 v3, {O_LDS}, v2")
    for w in range(8):
        a(f"ds_read2st64_b32 v[{40+2*w}:{41+2*w}], v3 offset0:{4*w} offset1:{4*w+2}")
    a("s_waitcnt lgkmcnt(0)")
    for st in (1, 2, 4, 8):
        for w in range(0, 16, 2*st):
            a(f"v_add_f32 v{40+w}, v{40+w}, v{40+w+st}")
    a("v_mov_b32 v41, s27")
    a("v_lshlrev_b32 v2, 1, v2")
    a("s_lshl_b32 s57, s56, 10"); a(f"s_add_u32 s57, s57, {G1O}")
    a("buffer_store_dwordx2 v[40:41], v2, s[36:39], s57 offen sc1")
    a("s_branch L_g1")
    a("L_notsum:")
    a("s_cmp_eq_u32 s26, 2")
    a("s_cbranch_scc0 L_g1")
    a("v_and_b32 v3, 15, v0"); a("v_lshlrev_b32 v3, 2, v3")
    a(f"ds_read_b32 v42, v3 offset:{L_LDS}")
    a("s_waitcnt lgkmcnt(0)")
    for ror in (8, 4, 2, 1):
        a(f"v_add_f32_dpp v42, v42, v42 row_ror:{ror} row_mask:0xf bank_mask:0xf")
    a("v_mov_b32 v40, v4"); a("v_mov_b32 v41, s27"); a("v_mov_b32 v43, s27")
    a("s_lshl_b32 s57, s56, 4"); a(f"s_add_u32 s57, s57, {G1ML}")
    a("v_mov_b32 v2, 0")
    a("s_mov_b64 exec, 1")
    a("buffer_store_dwordx4 v[40:43], v2, s[36:39], s57 offen sc1")
    a("s_mov_b64 exec, -1")
    a("L_g1:")
    a("s_lshr_b32 s57, s26, 1")
    a("s_lshl_b32 s56, s52, 1"); a("s_add_u32 s56, s56, s57")
    a("s_and_b32 s58, s26, 1"); a("s_lshl_b32 s58, s58, 9")
    a("v_lshlrev_b32 v2, 3, v0"); a("v_add_u32 v2, s58, v2")
    a("s_lshl_b32 s65, s56, 12"); a(f"s_add_u32 s65, s65, {G1O}")
    a("s_lshl_b32 s66, s56, 6"); a(f"s_add_u32 s66, s66, {G1ML}")
    a("v_mov_b32 v3, 0")
    a("s_mov_b32 s64, 0")
    a("L_g1poll:")
    for s in range(4):
        a(f"buffer_load_dwordx2 v[{40+2*s}:{41+2*s}], v2, s[36:39], s65 offen offset:{1024*s} sc1")
    for s in range(4):
        a(f"buffer_load_dwordx4 v[{48+4*s}:{51+4*s}], v3, s[36:39], s66 offen offset:{16*s} sc1")
    a("s_waitcnt vmcnt(0)")
    tagcheck([f"v{41+2*s}" for s in range(4)] + [f"v{49+2*s}" for s in range(8)], "L_g1poll")
    a("v_max3_f32 v64, v48, v52, v56"); a("v_max_f32 v64, v64, v60")
    for s in range(4): a(f"v_sub_f32 v{65+s}, v{48+4*s}, v64")
    for s in range(4): a(f"v_mul_f32 v{65+s}, s63, v{65+s}")
    for s in range(4): a(f"v_exp_f32 v{65+s}, v{65+s}")
    a("v_mul_f32 v69, v65, v50"); a("v_mul_f32 v70, v65, v40")
    for s in range(1, 4):
        a(f"v_fmac_f32 v69, v{65+s}, v{50+4*s}")
        a(f"v_fmac_f32 v70, v{65+s}, v{40+2*s}")
    a("v_rcp_f32 v71, v69")
    a("v_mul_f32 v72, v70, v71")
    a("v_fma_f32 v70, -v72, v69, v70")
    a("v_fma_f32 v72, v70, v71, v72")
    a("v_cvt_pk_bf16_f32 v72, v72, v72")
    a("v_lshrrev_b32 v2, 2, v2")
    a("s_lshl_b32 s57, s57, 8")
    a("v_add_u32 v2, s57, v2")
    a(f"ds_write_b16 v2, v72 offset:{OF_LDS}")
    a("s_waitcnt lgkmcnt(0)")
    a("L_barE:")
    a("s_barrier")
    a("s_cmp_lt_u32 s26, 5")
    a("s_cbranch_scc0 L_exit")
    a("v_bfe_u32 v2, v0, 2, 1"); a("v_lshlrev_b32 v2, 8, v2")
    a("v_lshrrev_b32 v3, 4, v0"); a("v_lshl_add_u32 v2, v3, 4, v2")
    for ks in range(4):
        a(f"ds_read_b128 v[{40+4*ks}:{43+4*ks}], v2 offset:{OF_LDS + 64*ks}")
    for ks in range(4):
        a(f"s_waitcnt lgkmcnt({3-ks})")
        a(f"v_mfma_f32_16x16x32_bf16 v[56:59], v[{40+4*ks}:{43+4*ks}], v[{16+4*ks}:{19+4*ks}], {'0' if ks == 0 else 'v[56:59]'}")
    a("v_lshrrev_b32 v2, 4, v0"); a("v_mul_u32_u24 v2, 640, v2")
    a("v_and_b32 v3, 15, v0"); a("v_lshl_add_u32 v2, v3, 3, v2")
    a("s_lshl_b32 s56, s55, 5"); a("s_add_u32 s56, s56, s52"); a("s_mul_i32 s56, s56, 1280")
    a("s_lshl_b32 s57, s26, 7"); a("s_add_u32 s56, s56, s57"); a(f"s_add_u32 s56, s56, {G2A}")
    a("v_mov_b32 v57, s27")
    a("s_mov_b32 exec_hi, 0")
    a("buffer_store_dwordx2 v[56:57], v2, s[36:39], s56 offen sc1")
    a("s_mov_b64 exec, -1")
    stamp(7)
    a("s_cmp_eq_u32 s26, 0")
    a("s_cbranch_scc0 L_exit")
    a("v_and_b32 v2, 31, v0"); a("v_mul_u32_u24 v2, 1280, v2")
    a("v_lshrrev_b32 v3, 5, v0"); a(f"s_mov_b32 s56, {G2B-G2A}"); a("v_mul_lo_u32 v3, v3, s56")
    a("v_add_u32 v2, v2, v3")
    a("s_mul_i32 s56, s55, 40960"); a("s_mul_i32 s57, s52, 40"); a("s_add_u32 s56, s56, s57"); a(f"s_add_u32 s56, s56, {G2A}")
    a("s_mul_i32 s57, s52, 5")
    a("s_cmp_ge_u32 s57, 80")
    a("s_cselect_b32 s58, 560, 0")
    a("s_add_u32 s57, s57, s58")
    a("s_mul_i32 s58, s55, 80"); a("s_add_u32 s57, s57, s58")
    a("s_lshl_b32 s57, s57, 1")
    a("v_min_u32 v5, 4, v0")
    a("v_lshlrev_b32 v5, 1, v5")
    a("buffer_load_ushort v6, v5, s[44:47], s57 offen")
    for k in range(5):
        a(f"v_mov_b32 v{40+2*k}, 0"); a(f"v_mov_b32 v{41+2*k}, s27")
    a("s_mov_b32 exec_lo, -1"); a("s_mov_b32 exec_hi, 0x07ffffff")
    a("s_mov_b32 s64, 0")
    a("L_g2poll:")
    a("buffer_load_dwordx4 v[40:43], v2, s[36:39], s56 offen sc1")
    a("buffer_load_dwordx4 v[44:47], v2, s[36:39], s56 offen offset:16 sc1")
    a("buffer_load_dwordx2 v[48:49], v2, s[36:39], s56 offen offset:32 sc1")
    a("s_waitcnt vmcnt(0)")
    tagcheck([f"v{41+2*k}" for k in range(5)], "L_g2poll")
    a("s_mov_b64 exec, -1")
    for ror in (8, 4, 2, 1):
        for k in range(5):
            a(f"v_add_f32_dpp v{40+2*k}, v{40+2*k}, v{40+2*k} row_ror:{ror} row_mask:0xf bank_mask:0xf")
    for k in range(5): a(f"v_mov_b32 v{41+2*k}, v{40+2*k}")
    for k in range(5): a(f"v_permlane16_swap_b32 v{40+2*k}, v{41+2*k}")
    for k in range(5): a(f"v_add_f32 v{40+2*k}, v{40+2*k}, v{41+2*k}")
    a("v_and_b32 v3, 31, v0")
    for k in range(1, 5):
        a(f"v_cmp_eq_u32 vcc, {k}, v3")
        a(f"v_cndmask_b32 v40, v40, v{40+2*k}, vcc")
    a("v_cvt_pk_bf16_f32 v40, v40, v40"); a("v_and_b32 v40, s74, v40")
    a("v_mov_b32 v41, v40")
    a("v_permlane32_swap_b32 v40, v41")
    a("v_lshlrev_b32 v6, 16, v6")
    a("v_add_f32 v6, v6, v40")
    a("v_cvt_pk_bf16_f32 v6, v6, v6"); a("v_and_b32 v6, s74, v6")
    a("v_add_f32 v6, v6, v41")
    a("v_cvt_pk_bf16_f32 v6, v6, v6")
    a("s_mov_b64 exec, 0x1f")
    a("buffer_store_short v6, v5, s[48:51], s57 offen")
    a("s_mov_b64 exec, -1")
    a("s_cmp_eq_u32 s2, 0")
    a("s_cbranch_scc0 L_exit")
    a("v_mov_b32 v2, 0"); a("v_mov_b32 v3, s27")
    a("s_mov_b64 exec, 1")
    a("buffer_store_dword v3, v2, s[36:39], 0 offen sc1")
    a("s_mov_b64 exec, -1")
    a("L_exit:")
    if diag:
        a("s_memrealtime s[96:97]")
        a("s_waitcnt lgkmcnt(0)")
        a("s_lshl_b32 s56, s2, 4"); a("s_add_u32 s56, s56, s26"); a("s_mul_i32 s56, s56, 80"); a(f"s_add_u32 s56, s56, {STAMPS}")
        a("v_mov_b32 v2, 0")
        a("s_mov_b64 exec, 1")
        for i in range(NST+1):
            a(f"v_mov_b32 v4, s{80+2*i}"); a(f"v_mov_b32 v5, s{81+2*i}")
            a(f"buffer_store_dwordx2 v[4:5], v2, s[36:39], s56 offen offset:{8*i}")
            a("s_nop 1")
    a("L_end:")
    a("s_endpgm")
    body = a.finish()
    out = HDR.rstrip() + "\n"
    out += f"; @launch grid=(256,1,1) block=(1024,1,1) lds={LDS_SIZE}\n"
    out += '.amdgcn_target "amdgcn-amd-amdhsa--gfx950"\n.text\n'
    out += f".globl {KN}_kernel\n.p2align 8\n.type {KN}_kernel,@function\n{KN}_kernel:\n"
    out += body
    out += '.section .rodata,"a"\n.p2align 6\n'
    out += f".amdhsa_kernel {KN}_kernel\n  .amdhsa_next_free_vgpr 128\n  .amdhsa_next_free_sgpr 100\n  .amdhsa_accum_offset 128\n"
    out += "  .amdhsa_group_segment_fixed_size 0\n  .amdhsa_kernarg_size 88\n  .amdhsa_user_sgpr_count 2\n"
    out += "  .amdhsa_user_sgpr_kernarg_segment_ptr 1\n  .amdhsa_system_sgpr_workgroup_id_x 1\n.end_amdhsa_kernel\n"
    open(name, "w").write(out)
    print(name, "lines", len(out.splitlines()), "pads", a.npad)

if __name__ == "__main__":
    gen("k1.s")
    gen("k1_diag.s", diag=True)
```
